```python
import torch

def _softmax(x, axis=-1):
    return torch.softmax(x, dim=axis)

def _gelu(x):
    return torch.nn.functional.gelu(x, approximate='tanh')

def _silu(x):
    return torch.nn.functional.silu(x)

def _sigmoid(x):
    return torch.sigmoid(x)

def _layernorm(x, axis=-1, eps=1e-05):
    m = x.mean(dim=axis, keepdim=True)
    v = x.var(dim=axis, keepdim=True, unbiased=False)
    return (x - m) / torch.sqrt(v + eps)

def _scatter_add(tgt, idx, src, axis=0):
    return tgt.clone().index_add_(axis, idx, src)

def _segment_sum(src, seg, n):
    out = torch.zeros((n,) + src.shape[1:], dtype=src.dtype)
    return out.index_add_(0, seg, src)

def _pad(x, pw):
    flat = tuple((v for pair in reversed(pw) for v in pair))
    return torch.nn.functional.pad(x, flat)
kernel_name = 'adaLN_cond__sliding_block_cached__dense_activation_squared_relu__prompt'

def setup_inputs():

    _w = lambda a: (lambda t: t.to(torch.bfloat16) if t.is_floating_point() else t)(torch.as_tensor(a))

    def _A_setup():
        B, Sq, D = (1, 2048, 512)
        Hq, Hkv, Sk, Dh = (32, 8, 2048, 128)
        assert Hq % Hkv == 0, (Hq, Hkv)
        return {'x': _w((lambda *s: torch.randn(*s, dtype=torch.bfloat16) * 0.05)(B, Sq, D)), 'k_cache': _w((lambda *s: torch.randn(*s, dtype=torch.bfloat16) * 3.2)(B, Hkv, Sk, Dh)), 'v_cache': _w((lambda *s: torch.randn(*s, dtype=torch.bfloat16) * 0.4)(B, Hkv, Sk, Dh)), 'wq': _w((lambda *s: torch.randn(*s, dtype=torch.bfloat16) * 3.2)(D, Hq * Dh) * D ** (-0.5)), 'wo': _w((lambda *s: torch.randn(*s, dtype=torch.bfloat16) * 0.4)(Hq * Dh, D) * (Hq * Dh) ** (-0.5))}
    _A_in = _A_setup()

    def _B_setup():
        B, S, D, F = (1, 2048, 512, 1792)
        return {'x': _w((lambda *s: torch.randn(*s, dtype=torch.bfloat16) * 0.05)(B, S, D)), 'w1': _w((lambda *s: torch.randn(*s, dtype=torch.bfloat16) * 0.05)(D, F)), 'b1': _w((lambda *s: torch.randn(*s, dtype=torch.bfloat16) * 0.4)(F)), 'w2': _w((lambda *s: torch.randn(*s, dtype=torch.bfloat16) * 0.05)(F, D)), 'b2': _w((lambda *s: torch.randn(*s, dtype=torch.bfloat16) * 6.4)(D))}
    _B_in = _B_setup()
    return {'A_x': _A_in['x'], 'A_k_cache': _A_in['k_cache'], 'A_v_cache': _A_in['v_cache'], 'A_wq': _A_in['wq'], 'A_wo': _A_in['wo'], 'B_x': _B_in['x'], 'B_w1': _B_in['w1'], 'B_b1': _B_in['b1'], 'B_w2': _B_in['w2'], 'B_b2': _B_in['b2'], 'c': _w((lambda *s: torch.randn(*s, dtype=torch.bfloat16) * 0.1)(1, 512) * 8.0), 'w_mod': _w((lambda *s: torch.randn(*s, dtype=torch.bfloat16) * 0.1)(512, 6 * 512) * 512 ** (-0.5) * 8.0)}

def reference(A_x, A_k_cache, A_v_cache, A_wq, A_wo, B_x, B_w1, B_b1, B_w2, B_b2, c, w_mod):

    def _A_ref(x, k_cache, v_cache, wq, wo):
        B, Sq, D = x.shape
        Hq, Dh = (32, 128)
        Hkv, Sk = (k_cache.shape[1], k_cache.shape[2])
        W = min(4096, max(256, Sk // 4))
        rep = Hq // Hkv
        q = (lambda x, *d: x.permute(*d))((x @ wq).reshape(B, Sq, Hq, Dh), 0, 2, 1, 3)
        k = (lambda x, n, axis: torch.repeat_interleave(x, n, dim=axis))(k_cache[:, :, Sk - W:, :], rep, axis=1)
        v = (lambda x, n, axis: torch.repeat_interleave(x, n, dim=axis))(v_cache[:, :, Sk - W:, :], rep, axis=1)
        scores = torch.einsum('bhqd,bhkd->bhqk', q, k) * Dh ** (-0.5)
        p = _softmax(scores, axis=-1)
        o = torch.einsum('bhqk,bhkd->bhqd', p, v)
        return (lambda x, *d: x.permute(*d))(o, 0, 2, 1, 3).reshape(B, Sq, Hq * Dh) @ wo

    def _B_ref(x, w1, b1, w2, b2):
        h = torch.einsum('bsd,df->bsf', x, w1) + b1
        zero = torch.zeros_like(h)
        r = torch.where(h > zero, h, zero)
        h = r * r
        out = torch.einsum('bsf,fd->bsd', h, w2) + b2
        return out
    x = A_x
    mod = (_silu(c) @ w_mod).reshape(c.shape[0], 6, 1, -1)
    sa, ca, ga, sb, cb, gb = (mod[:, 0].clone(), mod[:, 1].clone(), mod[:, 2].clone(), mod[:, 3].clone(), mod[:, 4].clone(), mod[:, 5].clone())
    h = _layernorm(x, axis=-1) * (1 + ca) + sa
    x = x + ga * _A_ref(h, A_k_cache, A_v_cache, A_wq, A_wo)
    h = _layernorm(x, axis=-1) * (1 + cb) + sb
    x = x + gb * _B_ref(h, B_w1, B_b1, B_w2, B_b2)
    return x
```

```python
import re

def v(i, n=1): return f'v{i}' if n == 1 else f'v[{i}:{i+n-1}]'
def a(i, n=1): return f'a{i}' if n == 1 else f'a[{i}:{i+n-1}]'
def s(i, n=1): return f's{i}' if n == 1 else f's[{i}:{i+n-1}]'

_REG = re.compile(r'^(-|abs\()?\|?([vas])(?:(\d+)|\[(\d+):(\d+)\])\|?\)?$')
def regs_of(op):
    op = op.strip()
    if op in ('vcc', ): return {('s', 'vcc')}
    if op in ('vcc_lo', 'vcc_hi'): return {('s', 'vcc')}
    if op == 'exec': return {('s', 'exec')}
    if op == 'm0': return {('s', 'm0')}
    if op == 'scc': return {('s', 'scc')}
    m = _REG.match(op)
    if not m: return set()
    k = m.group(2)
    if m.group(3) is not None:
        return {(k, int(m.group(3)))}
    return {(k, i) for i in range(int(m.group(4)), int(m.group(5)) + 1)}

TRANS = ('v_exp_f32', 'v_log_f32', 'v_rcp_f32', 'v_rsq_f32', 'v_sqrt_f32', 'v_sin_f32', 'v_cos_f32', 'v_rcp_iflag_f32')

class Ins:
    __slots__ = ('text', 'op', 'rd', 'wr', 'kind', 'passes', 'srcc', 'srcab', 'dpp', 'nops', 'data', 'tag')
    def __init__(self, text):
        self.text = text
        t = text.split(';')[0].strip()
        parts = t.split(None, 1)
        self.op = op = parts[0]
        rest = parts[1] if len(parts) > 1 else ''
        ops = []; cur = ''; depth = 0
        for ch in rest:
            if ch in '[(': depth += 1
            if ch in '])': depth -= 1
            if ch == ',' and depth == 0:
                ops.append(cur.strip()); cur = ''
            else: cur += ch
        if cur.strip(): ops.append(cur.strip())
        mods = ''
        if ops:
            lp = ops[-1].split(None, 1)
            ops[-1] = lp[0]
            mods = lp[1] if len(lp) > 1 else ''
        self.rd = set(); self.wr = set(); self.passes = 0; self.srcc = set(); self.srcab = set(); self.data = set()
        self.dpp = any(x in mods for x in ('quad_perm', 'row_', 'wave_')) or op.endswith('_dpp')
        self.nops = 1
        self.tag = None
        R = [regs_of(o) for o in ops]
        if op.startswith('v_mfma'):
            self.kind = 'mfma'
            self.wr = R[0]; self.srcab = R[1] | R[2]; self.srcc = R[3]; self.rd = self.srcab | self.srcc
            self.passes = 8 if '32x32x16' in op else 4
        elif op.startswith('ds_read') or op.startswith('ds_bpermute') or op.startswith('ds_swizzle') or op.startswith('ds_permute'):
            self.kind = 'ldsr'; self.wr = R[0]; self.rd = set().union(*R[1:]) if len(R) > 1 else set()
        elif op.startswith('ds_write') or op.startswith('ds_add') or op.startswith('ds_or') or op.startswith('ds_max'):
            self.kind = 'ldsw'; self.rd = set().union(*R); self.data = set().union(*R[1:])
        elif op.startswith('buffer_load') or op.startswith('global_load'):
            if ' lds' in (' ' + mods) or op.startswith('global_load_lds'):
                self.kind = 'dma'; self.rd = set().union(*R) | {('s', 'm0')}
            else:
                self.kind = 'vmemr'; self.wr = R[0]; self.rd = set().union(*R[1:])
        elif op.startswith('buffer_store') or op.startswith('global_store') or op.startswith('buffer_atomic') or op.startswith('global_atomic'):
            self.kind = 'vmemw'; self.rd = set().union(*R)
            self.data = R[0] if op.startswith('buffer') else R[1]
            if 'atomic' in op and 'sc0' in mods:
                self.kind = 'vmemr'; self.wr = R[0]
        elif op.startswith('buffer_inv') or op.startswith('buffer_wbl2'):
            self.kind = 'vmemw'
        elif op.startswith('s_load') or op.startswith('s_buffer_load') or op.startswith('s_memtime') or op.startswith('s_memrealtime'):
            self.kind = 'smem'; self.wr = R[0]; self.rd = set().union(*R[1:]) if len(R) > 1 else set()
        elif op == 's_nop':
            self.kind = 'nop'; self.nops = int(ops[0], 0) + 1
        elif op in ('s_waitcnt', 's_barrier', 's_endpgm', 's_setprio', 's_sleep') or op.startswith('s_branch') or op.startswith('s_cbranch'):
            self.kind = 'ctl'
            if 'scc' in op: self.rd = {('s', 'scc')}
            if 'vcc' in op: self.rd = {('s', 'vcc')}
            if 'exec' in op: self.rd = {('s', 'exec')}
        elif op.startswith('s_cmp') or op.startswith('s_bitcmp'):
            self.kind = 'salu'; self.rd = set().union(*R); self.wr = {('s', 'scc')}
        elif op.startswith('s_'):
            self.kind = 'salu'; self.wr = set(R[0]) | {('s', 'scc')}; self.rd = set().union(*R[1:]) if len(R) > 1 else set()
            if op in ('s_mov_b32', 's_mov_b64', 's_movk_i32', 's_cselect_b32', 's_cselect_b64', 's_mul_i32', 's_getreg_b32', 's_mul_hi_u32'): self.wr = set(R[0])
            if op.startswith('s_cselect') or op.startswith('s_addc') or op.startswith('s_subb'): self.rd |= {('s', 'scc')}
            if 'saveexec' in op: self.wr |= {('s', 'exec')}; self.rd |= {('s', 'exec')}
            if op in ('s_addk_i32', 's_mulk_i32'): self.rd |= R[0]
        elif op.startswith('v_'):
            self.kind = 'valu'
            if op.startswith('v_cmp'):
                self.wr = set(R[0]); self.rd = set().union(*R[1:])
                if op.startswith('v_cmpx'): self.wr |= {('s', 'exec')}
            elif op.startswith('v_permlane') and 'swap' in op:
                self.wr = R[0] | R[1]; self.rd = R[0] | R[1]
            elif op.startswith('v_add_co') or op.startswith('v_sub_co') or op.startswith('v_addc_co') or op.startswith('v_subb_co') or op.startswith('v_subrev_co'):
                self.wr = R[0] | R[1]; self.rd = set().union(*R[2:])
            elif op == 'v_nop':
                self.kind = 'nop'
            else:
                self.wr = set(R[0]); self.rd = set().union(*R[1:]) if len(R) > 1 else set()
                if op.startswith('v_fmac') or op.startswith('v_dot2c') or op.startswith('v_pk_fmac') or op.startswith('v_writelane'): self.rd |= R[0]
                if op.startswith('v_cndmask') and len(ops) == 3: self.rd |= {('s', 'vcc')}
                if self.dpp: self.rd |= R[0]
        else:
            raise ValueError('unknown instr ' + text)

class Asm:
    def __init__(self):
        self.items = []
    def __call__(self, txt):
        for l in txt.strip('\n').split('\n'):
            l = l.strip()
            if not l: continue
            if l.startswith(';'):
                self.items.append('  ' + l)
            else:
                self.items.append(Ins(l))
    def label(self, name):
        self.items.append(name + ':')
    def comment(self, c):
        self.items.append('  ; ' + c)
    def raw(self, t):
        self.items.append(t)
    def text(self):
        return '\n'.join(('  ' + i.text) if isinstance(i, Ins) else i for i in self.items) + '\n'

def need_ws(p, c):
    n = 0
    vw = {r for r in p.wr if r[0] in 'va'}
    sw = {r for r in p.wr if r[0] == 's'}
    if p.kind == 'valu':
        if c.kind == 'mfma' and (vw & c.rd): n = max(n, 2)
        if c.kind == 'valu':
            if c.dpp and (vw & c.rd): n = max(n, 2)
            if c.op.startswith('v_permlane') and (vw & c.rd): n = max(n, 2)
            if (c.op.startswith('v_readlane') or c.op.startswith('v_readfirstlane')) and (vw & c.rd): n = max(n, 1)
            if p.op in TRANS and c.op not in TRANS and (vw & (c.rd | c.wr)): n = max(n, 1)
            if sw & c.rd:
                n = max(n, 4 if (c.op.startswith('v_readlane') or c.op.startswith('v_writelane')) else 2)
            if ('s', 'exec') in sw:
                if c.dpp: n = max(n, 5)
                if c.op.startswith('v_readlane') or c.op.startswith('v_readfirstlane') or c.op.startswith('v_permlane'): n = max(n, 4)
        if p.op in TRANS and c.kind in ('ldsw', 'vmemw', 'ldsr', 'vmemr', 'dma') and (vw & c.rd): n = max(n, 1)
        if c.kind in ('vmemr', 'vmemw', 'dma') and (sw & c.rd): n = max(n, 5)
        if c.kind == 'mfma' and ('s', 'exec') in sw: n = max(n, 4)
        if c.kind in ('salu', 'smem', 'ctl') and (sw & c.rd): n = max(n, 1 if c.kind != 'ctl' else 5) if (c.kind == 'ctl' and ('vcc' in c.op or 'exec' in c.op)) else max(n, 1)
    if p.kind == 'salu':
        if c.kind == 'dma' and ('s', 'm0') in p.wr: n = max(n, 1)
    if p.kind == 'mfma':
        big = {8: 12, 4: 8}[p.passes]
        if c.kind == 'mfma':
            if p.wr & c.srcab: n = max(n, big)
            if p.wr & c.srcc:
                if c.srcc == p.wr and c.passes == p.passes: pass
                else: n = max(n, {8: 10, 4: 6}[p.passes])
            elif p.wr & c.wr:
                n = max(n, {8: 10, 4: 6}[p.passes])
        elif c.kind in ('valu', 'ldsr', 'ldsw', 'vmemr', 'vmemw', 'dma'):
            if p.wr & (c.rd | c.wr): n = max(n, big)
            if c.kind == 'valu' and (p.srcc & c.wr): n = max(n, {8: 7, 4: 3}[p.passes])
    if p.kind in ('vmemw', 'ldsw') and len(p.data) >= 3 and p.kind == 'vmemw':
        if (p.data & c.wr): n = max(n, 2)
    return n

def fix_hazards(items, loops=True, verbose=False):
    out = []
    ins_count = 0
    def dist_scan(seq, c):
        need = 0; d = 0
        for p in reversed(seq):
            if d >= 20: break
            w = need_ws(p, c)
            if w > d: need = max(need, w - d)
            d += p.nops
        return need
    hist = []
    labels = {}
    for it in items:
        if not isinstance(it, Ins):
            if it.endswith(':'): labels[it[:-1]] = len(out)
            out.append(it); continue
        n = dist_scan(hist, it)
        while n > 0:
            k = min(n, 16)
            nop = Ins(f's_nop {k-1}')
            out.append(nop); hist.append(nop); n -= k; ins_count += 1
            if verbose: print('hazard nop', k, 'before', it.text)
        out.append(it); hist.append(it)
        if it.op.startswith('s_cbranch') or it.op.startswith('s_branch'):
            tgt = it.text.split()[1]
            if tgt in labels:
                seq = list(hist)
                for j in range(labels[tgt], len(out)):
                    c = out[j]
                    if not isinstance(c, Ins): continue
                    n2 = dist_scan(seq, c)
                    if n2 > 0:
                        raise RuntimeError(f'loop-carried hazard: {c.text} needs {n2} more after back-edge to {tgt}')
                    seq.append(c)
                    if j - labels[tgt] > 24: break
    idx = {}
    for i, it in enumerate(out):
        if not isinstance(it, Ins) and it.endswith(':'): idx[it[:-1]] = i
    for i, it in enumerate(out):
        if isinstance(it, Ins) and (it.op.startswith('s_cbranch') or it.op.startswith('s_branch')):
            tgt = it.text.split()[1]
            if tgt in idx and idx[tgt] > i:
                seq = [x for x in out[max(0, i - 30):i + 1] if isinstance(x, Ins)]
                cnt = 0
                for j in range(idx[tgt], len(out)):
                    c = out[j]
                    if not isinstance(c, Ins): continue
                    n2 = dist_scan(seq, c)
                    if n2 > 0:
                        raise RuntimeError(f'fwd-branch hazard: {c.text} needs {n2} more after jump to {tgt}')
                    seq.append(c); cnt += 1
                    if cnt > 24: break
    return out, ins_count

def check_waits(items):
    lds = []
    vm = []
    for it in items:
        if not isinstance(it, Ins): continue
        if it.op == 's_waitcnt':
            m = re.search(r'vmcnt\((\d+)\)', it.text)
            if m:
                n = int(m.group(1)); vm = vm[len(vm) - n:] if n < len(vm) else vm
                if n == 0: vm = []
            m = re.search(r'lgkmcnt\((\d+)\)', it.text)
            if m:
                n = int(m.group(1))
                if any(k == 'smem' for k, _ in lds) and n != 0:
                    pass
                else:
                    lds = lds[len(lds) - n:] if n < len(lds) else lds
                    if n == 0: lds = []
            continue
        touched = it.rd | it.wr
        for k, w in lds:
            if w & touched: raise RuntimeError(f'missing lgkm wait before: {it.text}')
        for k, w in vm:
            if w & touched: raise RuntimeError(f'missing vm wait before: {it.text}')
        if it.kind in ('ldsr', 'ldsw', 'smem'): lds.append((it.kind, it.wr))
        if it.kind in ('vmemr', 'vmemw', 'dma'): vm.append((it.kind, it.wr))

def auto_waits(items, init_lds=None, init_vm=None):
    out = []
    lds = list(init_lds or []); vm = list(init_vm or [])
    for it in items:
        if not isinstance(it, Ins):
            out.append(it); continue
        if it.op == 's_waitcnt':
            m = re.search(r'vmcnt\((\d+)\)', it.text)
            if m:
                n = int(m.group(1)); vm = vm[len(vm) - n:] if 0 < n < len(vm) else ([] if n == 0 else vm)
            m = re.search(r'lgkmcnt\((\d+)\)', it.text)
            if m:
                n = int(m.group(1))
                if n == 0: lds = []
                elif not any(k == 'smem' for k, _ in lds): lds = lds[len(lds) - n:] if n < len(lds) else lds
            out.append(it); continue
        touched = it.rd | it.wr
        wl = None; wv = None
        for i, (k, w) in enumerate(lds):
            if w & touched: wl = len(lds) - 1 - i
        for i, (k, w) in enumerate(vm):
            if w & touched: wv = len(vm) - 1 - i
        if wl is not None:
            if any(k == 'smem' for k, _ in lds): wl = 0
            wl = min(wl, 15)
        if wv is not None: wv = min(wv, 63)
        if wl is not None or wv is not None:
            t = 's_waitcnt'
            if wv is not None:
                t += f' vmcnt({wv})'; vm = vm[len(vm) - wv:] if wv else []
            if wl is not None:
                t += f' lgkmcnt({wl})'; lds = lds[len(lds) - wl:] if wl else []
            out.append(Ins(t))
        out.append(it)
        if it.kind in ('ldsr', 'ldsw', 'smem'): lds.append((it.kind, it.wr))
        if it.kind in ('vmemr', 'vmemw', 'dma'): vm.append((it.kind, it.wr))
    return out, lds, vm

def render(items):
    return '\n'.join(('  ' + i.text) if isinstance(i, Ins) else i for i in items) + '\n'

def finish(A, auto=True, verbose=False):
    items = A.items
    if auto:
        items, _, _ = auto_waits(items)
    items, n = fix_hazards(items, verbose=verbose)
    return render(items)

def kernel_header(name):
    return f'.globl {name}\n.p2align 8\n.type {name},@function\n{name}:\n'

def kernel_desc(name, vgpr, sgpr, accum, wgy=False):
    return f'''.p2align 6
.amdhsa_kernel {name}
  .amdhsa_next_free_vgpr {vgpr}
  .amdhsa_next_free_sgpr {sgpr}
  .amdhsa_accum_offset {accum}
  .amdhsa_group_segment_fixed_size 0
  .amdhsa_kernarg_size 120
  .amdhsa_user_sgpr_count 2
  .amdhsa_user_sgpr_kernarg_segment_ptr 1
  .amdhsa_system_sgpr_workgroup_id_x 1
''' + ('  .amdhsa_system_sgpr_workgroup_id_y 1\n' if wgy else '') + '''  .amdhsa_float_denorm_mode_32 3
  .amdhsa_float_denorm_mode_16_64 3
.end_amdhsa_kernel
'''

def make_file(kernels, header=''):
    out = header
    for k in kernels:
        out += f"; @launch kernel={k['name']} grid=({k['grid']},1,1) block=({k['block']},1,1) lds={k['lds']}\n"
    out += '.amdgcn_target "amdgcn-amd-amdhsa--gfx950"\n.text\n'
    seen = set()
    for k in kernels:
        if k['name'] in seen: continue
        seen.add(k['name'])
        out += kernel_header(k['name']) + k['body']
    out += '.section .rodata,"a"\n'
    seen = set()
    for k in kernels:
        if k['name'] in seen: continue
        seen.add(k['name'])
        out += kernel_desc(k['name'], k['vgpr'], k['sgpr'], k['accum'])
    return out
```

```python
from asmlib import *
KA_X, KA_K, KA_V, KA_WQ, KA_WO, KA_BX, KA_W1, KA_B1, KA_W2, KA_B2, KA_C, KA_WMOD, KA_OUT, KA_DBG, KA_WS = [8 * i for i in range(15)]
WS_MOD = 0x0
WS_STAT = 0x4000
WS_X2 = 0x100000
WS_H2 = 0x300000
WS_PA = 0x1000000
WS_PF = 0x2000000
WS_SIZE = 0x10000000
LOG2E = 1.4426950408889634
import struct
def f32bits(x): return struct.unpack('<I', struct.pack('<f', x))[0]
def hexf(x): return '0x%08x' % f32bits(x)

def srd(A, d, base, nbytes, off=0):
    if off:
        A(f's_add_u32 s{d}, s{base}, {hex(off)}')
        A(f's_addc_u32 s{d+1}, s{base+1}, 0')
    else:
        A(f's_mov_b32 s{d}, s{base}')
        A(f's_mov_b32 s{d+1}, s{base+1}')
    A(f's_mov_b32 s{d+2}, {hex(nbytes)}')
    A(f's_mov_b32 s{d+3}, 0x20000')

def unpack(A, lo, hi, src):
    A(f'v_lshlrev_b32 v{lo}, 16, v{src}')
    A(f'v_and_b32 v{hi}, 0xffff0000, v{src}')

def round_bf16(A, d, x):
    A(f'v_cvt_pk_bf16_f32 v{d}, v{x}, v{x}')
    A(f'v_lshlrev_b32 v{d}, 16, v{d}')

def round2_bf16(A, d0, d1, x0, x1, tmp):
    A(f'v_cvt_pk_bf16_f32 v{tmp}, v{x0}, v{x1}')
    unpack(A, d0, d1, tmp)

def wave_allsum(A, regs, tmps, steps=(1, 2, 4, 8), x16=True, x32=True):
    for st in steps:
        for r in regs:
            A(f'v_add_f32 v{r}, v{r}, v{r} row_ror:{st} row_mask:0xf bank_mask:0xf')
    for op, on in (('v_permlane16_swap_b32', x16), ('v_permlane32_swap_b32', x32)):
        if not on: continue
        for r, t in zip(regs, tmps):
            A(f'v_mov_b32 v{t}, v{r}')
        for r, t in zip(regs, tmps):
            A(f'{op} v{t}, v{r}')
        for r, t in zip(regs, tmps):
            A(f'v_add_f32 v{r}, v{r}, v{t}')
```

```python
from common import *

RING0 = 65536
STAGE = 16384
NST = 6
RING_END = RING0 + NST * STAGE

class Loop:
    pass

def lane_setup(A, vl, vtmp, v_tr, v_bl, v_dw_rowpart=None):
    t0, t1 = vtmp, vtmp + 1
    A(f'v_lshrrev_b32 v{t0}, 5, v{vl}')
    A(f'v_lshlrev_b32 v{v_tr}, 10, v{t0}')
    A(f'v_bfe_u32 v{t1}, v{vl}, 2, 2')
    A(f'v_lshl_add_u32 v{v_tr}, v{t1}, 6, v{v_tr}')
    A(f'v_bfe_u32 v{t1}, v{vl}, 4, 1')
    A(f'v_lshl_add_u32 v{v_tr}, v{t1}, 5, v{v_tr}')
    A(f'v_and_b32 v{t1}, 1, v{vl}')
    A(f'v_lshl_add_u32 v{v_tr}, v{t1}, 4, v{v_tr}')
    A(f'v_bfe_u32 v{t1}, v{vl}, 1, 1')
    A(f'v_lshl_add_u32 v{v_tr}, v{t1}, 3, v{v_tr}')
    A(f'v_and_b32 v{t1}, 15, v{vl}')
    A(f'v_xor_b32 v{t1}, v{t1}, v{t0}')
    A(f'v_lshlrev_b32 v{v_bl}, 4, v{t1}')
    A(f'v_and_b32 v{t1}, 31, v{vl}')
    A(f'v_lshl_add_u32 v{v_bl}, v{t1}, 8, v{v_bl}')

def wdma_voff(A, vd, vl, vtmp, s_stride):
    t0, t1 = vtmp, vtmp + 1
    A(f'v_lshrrev_b32 v{t0}, 5, v{vl}')
    A(f'v_bfe_u32 v{t1}, v{vl}, 2, 2')
    A(f'v_lshl_add_u32 v{t0}, v{t0}, 2, v{t1}')
    A(f'v_mul_lo_u32 v{vd}, v{t0}, s{s_stride}')
    A(f'v_bfe_u32 v{t1}, v{vl}, 4, 1')
    A(f'v_lshl_add_u32 v{vd}, v{t1}, 6, v{vd}')
    A(f'v_and_b32 v{t1}, 3, v{vl}')
    A(f'v_lshl_add_u32 v{vd}, v{t1}, 4, v{vd}')

def interleave(mfmas, fillers):
    out = []
    for i, m in enumerate(mfmas):
        out.append(m)
        if i < len(fillers): out += fillers[i]
    return out

def spread(items, ngaps, start=0, end=None):
    end = ngaps if end is None else end
    g = [[] for _ in range(ngaps)]
    n = len(items)
    for i, it in enumerate(items):
        k = start + (i * (end - start)) // max(n, 1)
        g[k] += it if isinstance(it, list) else [it]
    return g

def merge(*gs):
    n = max(len(g) for g in gs)
    out = [[] for _ in range(n)]
    for g in gs:
        for i, x in enumerate(g): out[i] += x
    return out

class Gemm:
    def __init__(self, v_tr, v_trc, v_bl, v_bc, s_rd, s_wr, s_bf, s_tmp, FA, FB):
        self.__dict__.update(locals())
    def ring_adv(self, sreg, lo, hi):
        return [f's_add_u32 s{sreg}, s{sreg}, {STAGE}', f's_cmp_ge_u32 s{sreg}, {hi}', f's_cselect_b32 s{sreg}, {lo}, s{sreg}'] if lo <= 64 else \
               [f's_add_u32 s{sreg}, s{sreg}, {STAGE}', f's_cmp_ge_u32 s{sreg}, {hi}', f's_cselect_b32 s{sreg}, {lo}, s{sreg}']
    def reads(self, nmb, set_, sub_off, boff=0):
        r = []
        fa = self.FA + 16 * set_; fb = self.FB + 8 * set_
        r.append(f'ds_read_b128 a[{fb}:{fb+3}], v{self.v_bc} offset:{boff}')
        for mb in range(nmb):
            for j in range(2):
                off = sub_off + (mb // 2) * 2048 + j * 512 + (mb % 2) * 256
                r.append(f'ds_read_b64_tr_b16 a[{fa+4*mb+2*j}:{fa+4*mb+2*j+1}], v{self.v_trc} offset:{off}')
            if mb == 0:
                r.append(f'ds_read_b128 a[{fb+4}:{fb+7}], v{self.v_bc} offset:{boff+8192}')
        return r
    def mfmas(self, nmb, set_, acc, cinit=None):
        fa = self.FA + 16 * set_; fb = self.FB + 8 * set_
        out = []
        for mb in range(nmb):
            for nb in range(2):
                d = acc + 16 * (2 * mb + nb)
                c = f'v[{d}:{d+15}]' if cinit is None else cinit(mb, nb)
                out.append(f'v_mfma_f32_32x32x16_bf16 v[{d}:{d+15}], a[{fa+4*mb}:{fa+4*mb+3}], a[{fb+4*nb}:{fb+4*nb+3}], {c}')
        return out
    def b_adv(self):
        s_ = self.s_bf; t = self.s_tmp
        return [f's_add_u32 s{s_}, s{s_}, 32', f's_and_b32 s{t}, s{s_}, 0x100', f's_mul_i32 s{t}, s{t}, 63', f's_add_u32 s{s_}, s{s_}, s{t}',
                f'v_xor_b32 v{self.v_bc}, s{s_}, v{self.v_bl}']
    def rd_adv(self):
        return self.ring_adv(self.s_rd, 0, NST * STAGE) + [f'v_add_u32 v{self.v_trc}, s{self.s_rd}, v{self.v_tr}']

def finish_loops(segs, verbose=False):
    flat = []; marks = []
    for sg in segs:
        if sg[0] == 'lin':
            flat += sg[1]
        else:
            flat.append(f'@@B1'); flat += [Ins(i.text) if isinstance(i, Ins) else i for i in sg[2]]
            flat.append(f'@@B2 {sg[1]}'); flat += sg[2]
            flat.append(f'@@E')
    w, _, _ = auto_waits(flat)
    out = []; chk = []
    mode = 'lin'; body = []
    for it in w:
        if isinstance(it, str) and it.startswith('@@B1'):
            mode = 'skip'; continue
        if isinstance(it, str) and it.startswith('@@B2'):
            mode = 'body'; body = []; out.append(it.split()[1] + ':'); continue
        if isinstance(it, str) and it.startswith('@@E'):
            mode = 'lin'; chk += body + body + body; continue
        if mode == 'skip': continue
        out.append(it)
        if mode == 'body': body.append(it)
        else: chk.append(it)
    check_waits(chk)
    out, n = fix_hazards(out, verbose=verbose)
    return render(out)

def I(lst):
    return [Ins(x) if not (x.startswith(';') or x.endswith(':')) else x for x in lst]
```

```python
from common import *
def build_k0(warm=True):
    A = Asm()
    N = 'k0'
    A(f's_load_dwordx2 s[4:5], s[0:1], {KA_X}')
    A(f's_load_dwordx2 s[6:7], s[0:1], {KA_WQ}')
    A(f's_load_dwordx4 s[8:11], s[0:1], {KA_C}')
    A(f's_load_dwordx2 s[12:13], s[0:1], {KA_WS}')
    A('s_cmp_ge_u32 s2, 256')
    A(f's_cbranch_scc1 {N}_end')
    A('s_waitcnt lgkmcnt(0)')
    srd(A, 16, 4, 2048 * 1024)
    srd(A, 20, 6, 512 * 8192)
    srd(A, 24, 8, 1024)
    srd(A, 28, 10, 512 * 6144)
    srd(A, 32, 12, 0x100000)
    A('s_and_b32 s36, s2, 7')
    A('s_lshr_b32 s37, s2, 3')
    A('s_cmp_ge_u32 s2, 192')
    A(f's_cbranch_scc1 {N}_stats')
    A('s_mul_i32 s38, s36, 24')
    A('s_add_u32 s38, s38, s37')
    A('s_lshl_b32 s39, s38, 5')
    A('v_lshrrev_b32 v1, 1, v0')
    A('v_and_b32 v2, 1, v0')
    A('v_lshlrev_b32 v3, 1, v1')
    A('s_movk_i32 s40, 6144')
    A('v_mul_lo_u32 v4, v1, s40')
    A('v_lshl_add_u32 v4, v2, 4, v4')
    for i in range(4):
        A(f'buffer_load_ushort v{8+i}, v3, s[24:27], 0 offen offset:{256*i}')
    for i in range(4):
        A(f's_add_u32 s41, s39, {i*128*6144}')
        A(f'buffer_load_dwordx4 v[{16+4*i}:{19+4*i}], v4, s[28:31], s41 offen')
    if warm: emit_warm(A)
    for i in range(4):
        A(f'v_lshlrev_b32 v{8+i}, 16, v{8+i}')
    for i in range(4):
        A(f'v_mul_f32 v{12+i}, {hexf(-LOG2E)}, v{8+i}')
    for i in range(4):
        A(f'v_exp_f32 v{12+i}, v{12+i}')
    for i in range(4):
        A(f'v_add_f32 v{12+i}, 1.0, v{12+i}')
    for i in range(4):
        A(f'v_rcp_f32 v{12+i}, v{12+i}')
    for i in range(4):
        A(f'v_mul_f32 v{8+i}, v{8+i}, v{12+i}')
    for i in range(4):
        round_bf16(A, 8 + i, 8 + i)
    for i in range(4):
        for j in range(4):
            unpack(A, 40, 41, 16 + 4 * i + j)
            if i == 0:
                A(f'v_mul_f32 v{32+2*j}, v{8}, v40')
                A(f'v_mul_f32 v{33+2*j}, v{8}, v41')
            else:
                A(f'v_fmac_f32 v{32+2*j}, v{8+i}, v40')
                A(f'v_fmac_f32 v{33+2*j}, v{8+i}, v41')
    wave_allsum(A, list(range(32, 40)), list(range(40, 48)), steps=(2, 4, 8))
    A('v_lshrrev_b32 v5, 6, v0')
    A('v_lshlrev_b32 v5, 6, v5')
    A('v_lshl_add_u32 v5, v2, 5, v5')
    A('v_and_b32 v6, 63, v0')
    A('v_cmp_gt_u32 vcc, 2, v6')
    A('s_and_saveexec_b64 s[42:43], vcc')
    A('ds_write_b128 v5, v[32:35]')
    A('ds_write_b128 v5, v[36:39] offset:16')
    A('s_mov_b64 exec, s[42:43]')
    A('s_waitcnt lgkmcnt(0)')
    A('s_barrier')
    A('v_cmp_gt_u32 vcc, 16, v0')
    A('s_and_saveexec_b64 s[42:43], vcc')
    A(f's_cbranch_execz {N}_end')
    A('v_lshlrev_b32 v5, 2, v0')
    for w in range(4):
        A(f'ds_read_b32 v{32+w}, v5 offset:{64*w}')
    A('v_add_f32 v32, v32, v33')
    A('v_add_f32 v34, v34, v35')
    A('v_add_f32 v32, v32, v34')
    round_bf16(A, 32, 32)
    A('s_lshl_b32 s39, s38, 6')
    A(f'buffer_store_dword v32, v5, s[32:35], s39 offen')
    A('s_endpgm')
    A.label(f'{N}_stats')
    A('s_sub_u32 s38, s2, 192')
    A('v_lshrrev_b32 v1, 6, v0')
    A('v_and_b32 v2, 63, v0')
    A('v_readfirstlane_b32 s39, v1')
    A('s_lshl_b32 s38, s38, 2')
    A('s_add_u32 s38, s38, s39')
    A('s_lshl_b32 s40, s38, 13')
    A('v_lshlrev_b32 v3, 4, v2')
    for r in range(4):
        A(f'buffer_load_dwordx4 v[{16+4*r}:{19+4*r}], v3, s[16:19], s40 offen offset:{1024*r}')
    A('s_add_u32 s40, s40, 4096')
    for r in range(4, 8):
        A(f'buffer_load_dwordx4 v[{16+4*r}:{19+4*r}], v3, s[16:19], s40 offen offset:{1024*(r-4)}')
    if warm: emit_warm(A)
    for r in range(8):
        for j in range(4):
            unpack(A, 64 + 8 * r + 2 * j, 65 + 8 * r + 2 * j, 16 + 4 * r + j)
    for r in range(8):
        A(f'v_add_f32 v{48+r}, v{64+8*r}, v{65+8*r}')
    for j in range(2, 8):
        for r in range(8):
            A(f'v_add_f32 v{48+r}, v{48+r}, v{64+8*r+j}')
    wave_allsum(A, list(range(48, 56)), list(range(56, 64)))
    for r in range(8):
        A(f'v_mul_f32 v{48+r}, {hexf(1/512)}, v{48+r}')
    for j in range(8):
        for r in range(8):
            A(f'v_sub_f32 v{64+8*r+j}, v{64+8*r+j}, v{48+r}')
    for r in range(8):
        A(f'v_mul_f32 v{16+r}, v{64+8*r}, v{64+8*r}')
    for j in range(1, 8):
        for r in range(8):
            A(f'v_fmac_f32 v{16+r}, v{64+8*r+j}, v{64+8*r+j}')
    wave_allsum(A, list(range(16, 24)), list(range(56, 64)))
    ln_finish(A, list(range(48, 56)), list(range(16, 24)))
    A('v_mov_b32 v24, v48')
    A('v_mov_b32 v25, v16')
    for r in range(1, 8):
        A(f'v_cmp_eq_u32 vcc, {r}, v2')
        A(f'v_cndmask_b32 v24, v24, v{48+r}, vcc')
        A(f'v_cndmask_b32 v25, v25, v{16+r}, vcc')
    A('v_lshlrev_b32 v3, 3, v2')
    A('s_lshl_b32 s40, s38, 6')
    A(f's_add_u32 s40, s40, {WS_STAT}')
    A('v_cmp_gt_u32 vcc, 8, v2')
    A('s_and_saveexec_b64 s[42:43], vcc')
    A('buffer_store_dwordx2 v[24:25], v3, s[32:35], s40 offen')
    A.label(f'{N}_end')
    A('s_endpgm')
    return dict(name='k0_kernel', grid=256, block=256, lds=256, body=finish(A), vgpr=128, sgpr=48, accum=128)

def ln_finish(A, mus, vars_):
    for r in vars_:
        A(f'v_mul_f32 v{r}, {hexf(1/512)}, v{r}')
    for r in vars_: round_bf16(A, r, r)
    for r in vars_:
        A(f'v_add_f32 v{r}, {hexf(1e-5)}, v{r}')
    for r in vars_: round_bf16(A, r, r)
    for r in vars_:
        A(f'v_sqrt_f32 v{r}, v{r}')
    for r in vars_: round_bf16(A, r, r)
    for r in vars_:
        A(f'v_rcp_f32 v{r}, v{r}')
    for r in mus: round_bf16(A, r, r)

def emit_warm(A):
    A('v_lshrrev_b32 v120, 3, v0')
    A('v_lshlrev_b32 v120, 13, v120')
    A('v_and_b32 v121, 7, v0')
    A('v_lshl_add_u32 v120, v121, 7, v120')
    A('s_lshl_b32 s44, s37, 17')
    A('s_lshl_b32 s45, s36, 10')
    A('s_add_u32 s44, s44, s45')
    A('v_cmp_gt_u32 vcc, 128, v0')
    A('s_and_saveexec_b64 s[46:47], vcc')
    A('buffer_load_dword v122, v120, s[20:23], s44 offen')
    A('s_mov_b64 exec, s[46:47]')
    A('v_lshlrev_b32 v121, 7, v0')
    A('s_lshl_b32 s44, s37, 16')
    A('buffer_load_dword v123, v121, s[16:19], s44 offen')
    A('s_add_u32 s44, s44, 32768')
    A('buffer_load_dword v124, v121, s[16:19], s44 offen')

if __name__ == '__main__':
    open('../probe/k0.s', 'w').write(make_file([build_k0()]))
```

```python
from gemm import *
import math

QSCALE = LOG2E / math.sqrt(128.0)
OFFSET = 40.0
LMAX = 2.0 ** 60

COST = {'exp': 8, 'v': 4, 'v8': 5, 'lds': 5, 'dma': 5, 's': 4}
def cost(t):
    op = t.split()[0]
    if op == 'v_exp_f32': return 8
    if op.startswith('v_cvt_pk') or op.startswith('ds_') or op.startswith('buffer_'): return 5
    return 4

def fill(ngaps, fixed, stream, budget=23):
    g = [list(x) for x in fixed]
    tot_fixed = [sum(cost(t) for t in x) for x in g]
    tot_stream = sum(cost(t) for t in stream)
    lo, hi = 0.0, 1000.0
    for _ in range(40):
        mid = (lo + hi) / 2
        cap = sum(max(0, mid - f) for f in tot_fixed)
        if cap >= tot_stream: hi = mid
        else: lo = mid
    level = hi
    i = 0; carry = 0.0
    for k in range(ngaps):
        room = max(0, level - tot_fixed[k]) + carry
        while i < len(stream) and (room >= cost(stream[i]) * 0.5 or k == ngaps - 1):
            g[k].append(stream[i]); room -= cost(stream[i]); i += 1
        carry = room
    return g, level

def build_k2(verbose=False, stamps=False):
    N = 'k2'
    S_WV = 44; S_RB = 45; S_G = 46; S_RD = 47; S_WR = 48; S_BF = 49; S_T = 50; S_WB = 51; S_OQ = 52; S_OO = 53; S_OKV = 54; S_CNT = 55; S_T2 = 56
    S_SK = 57; S_SM = 58; S_SV = 59; S_FB = 60; S_T3 = 61
    S_ST = 64
    VL = 1; VT = 2; V_TR = 4; V_TRC = 5; V_BL = 6; V_BC = 7; VDQa = 8; VDQb = 9; VDOa = 10; VDOb = 11; VDK = 12; VDVa = 13; VDVb = 14
    VKB = 15; VKC0 = 16; VKC1 = 17; VVB = 18; VVC = 19; VO = 20; VL0 = 21; VL1 = 22; VM0 = 23; VM1 = 24; VX = 25; VT2 = 26
    SB = [32, 48]; PB = [64, 72]; NM = [80, 96]; TMP = 112
    ACC = 128
    AQ = 0; AK = 64; AV = 96
    G = Gemm(V_TR, V_TRC, V_BL, V_BC, S_RD, S_WR, S_BF, S_T, FA=128, FB=160)
    segs = []
    A = Asm()
    A(f's_load_dwordx4 s[4:7], s[0:1], {KA_X}')
    A(f's_load_dwordx4 s[8:11], s[0:1], {KA_V}')
    A(f's_load_dwordx2 s[12:13], s[0:1], {KA_WO}')
    A(f's_load_dwordx2 s[14:15], s[0:1], {KA_WS}')
    A('s_cmp_ge_u32 s2, 256')
    A(f's_cbranch_scc1 {N}_end')
    A(f's_and_b32 s{S_G}, s2, 7')
    A(f's_lshr_b32 s{S_RB}, s2, 3')
    A(f'v_and_b32 v{VL}, 63, v0')
    A(f'v_lshrrev_b32 v{VT}, 6, v0')
    A(f'v_readfirstlane_b32 s{S_WV}, v{VT}')
    A(f'v_lshlrev_b32 v{VO}, 4, v{VL}')
    A(f'v_lshlrev_b32 v{VX}, 5, v{VL}')
    A(f's_lshl_b32 s{S_T}, s{S_RB}, 16')
    A(f's_lshl_b32 s{S_T2}, s{S_WV}, 14')
    A(f's_add_u32 s{S_T}, s{S_T}, s{S_T2}')
    A(f's_lshr_b32 s{S_T2}, s{S_T}, 7')
    A('s_waitcnt lgkmcnt(0)')
    srd(A, 16, 4, 2048 * 1024)
    srd(A, 36, 14, 0x100000)
    XR = 128
    for r in range(16):
        if r % 4 == 0 and r: A(f's_add_u32 s{S_T}, s{S_T}, 4096')
        A(f'buffer_load_dwordx4 v[{XR+4*r}:{XR+4*r+3}], v{VO}, s[16:19], s{S_T} offen offset:{1024*(r%4)}')
    C2 = 32; C1 = 40
    A(f'buffer_load_dwordx4 v[{C2}:{C2+3}], v{VX}, s[36:39], 0 offen')
    A(f'buffer_load_dwordx4 v[{C2+4}:{C2+7}], v{VX}, s[36:39], 0 offen offset:16')
    A(f'buffer_load_dwordx4 v[{C1}:{C1+3}], v{VX}, s[36:39], 0 offen offset:2048')
    A(f'buffer_load_dwordx4 v[{C1+4}:{C1+7}], v{VX}, s[36:39], 0 offen offset:2064')
    A(f's_add_u32 s{S_T2}, s{S_T2}, {WS_STAT}')
    A(f's_add_u32 s62, s14, s{S_T2}')
    A(f's_addc_u32 s63, s15, 0')
    A(f's_load_dwordx16 s[{S_ST}:{S_ST+15}], s[62:63], 0')
    A(f's_load_dwordx16 s[{S_ST+16}:{S_ST+31}], s[62:63], 64')
    srd(A, 20, 10, 512 * 8192)
    srd(A, 24, 6, 8 * 2048 * 256)
    srd(A, 28, 8, 8 * 2048 * 256)
    srd(A, 32, 12, 4096 * 1024)
    srd(A, 40, 14, 0x1000000, WS_PA)
    A(f's_lshl_b32 s{S_WB}, s{S_WV}, 12')
    A(f's_add_u32 s{S_WB}, s{S_WB}, {RING0}')
    A(f's_movk_i32 s{S_T3}, 8192')
    wdma_voff(A, VDQa, VL, VT, S_T3)
    A(f'v_add_u32 v{VDQb}, {8*8192}, v{VDQa}')
    A(f's_lshl_b32 s{S_OQ}, s{S_G}, 2')
    A(f's_add_u32 s{S_OQ}, s{S_OQ}, s{S_WV}')
    A(f's_lshl_b32 s{S_OQ}, s{S_OQ}, 8')
    A(f's_mov_b32 s{S_WR}, 0')
    A(f's_mov_b32 s{S_RD}, 0')
    def slot_w(va, vb, srd_, so, inc):
        g = []
        g.append([f's_add_u32 m0, s{S_WR}, s{S_WB}', f'buffer_load_dwordx4 v{va}, s[{srd_}:{srd_+3}], s{so} offen lds'])
        g.append([f's_add_u32 m0, m0, 1024', f'buffer_load_dwordx4 v{vb}, s[{srd_}:{srd_+3}], s{so} offen lds'])
        g.append([f's_add_u32 m0, m0, {1024-128}', f'buffer_load_dwordx4 v{va}, s[{srd_}:{srd_+3}], s{so} offen offset:128 lds'])
        g.append([f's_add_u32 m0, m0, 1024', f'buffer_load_dwordx4 v{vb}, s[{srd_}:{srd_+3}], s{so} offen offset:128 lds', f's_add_u32 s{so}, s{so}, {inc}'])
        return g
    def slot_q(): return slot_w(VDQa, VDQb, 20, S_OQ, 16 * 8192)
    def slot_o(): return slot_w(VDOa, VDOb, 32, S_OO, 16 * 1024)
    def slot_kv():
        g = []
        g.append([f's_add_u32 m0, s{S_WR}, s{S_WB}', f'buffer_load_dwordx4 v{VDK}, s[24:27], s{S_OKV} offen lds'])
        g.append([f's_add_u32 m0, m0, 1024', f's_add_u32 s{S_T3}, s{S_OKV}, 4096', f'buffer_load_dwordx4 v{VDK}, s[24:27], s{S_T3} offen lds'])
        g.append([f's_add_u32 m0, m0, 1024', f'buffer_load_dwordx4 v{VDVa}, s[28:31], s{S_OKV} offen lds'])
        g.append([f's_add_u32 m0, m0, 1024', f'buffer_load_dwordx4 v{VDVb}, s[28:31], s{S_OKV} offen lds', f's_add_u32 s{S_OKV}, s{S_OKV}, 8192'])
        return g
    wadv = G.ring_adv(S_WR, 0, NST * STAGE)
    for sl in range(6):
        for g in slot_q():
            for x in g: A(x)
        for x in wadv: A(x)
    A(f's_lshl_b32 s{S_OKV}, s{S_G}, 19')
    A(f's_add_u32 s{S_OKV}, s{S_OKV}, {1536*256}')
    A(f's_lshl_b32 s{S_OO}, s{S_G}, 19')
    A(f'v_lshlrev_b32 v{VT}, 7, v{VL}')
    A(f's_lshl_b32 s{S_T}, s{S_RB}, 12')
    A(f's_add_u32 s{S_T}, s{S_T}, s{S_OKV}')
    A(f's_lshl_b32 s{S_T2}, s{S_RB}, 14')
    A(f's_add_u32 s{S_T2}, s{S_T2}, s{S_OO}')
    A(f's_cmp_eq_u32 s{S_WV}, 0')
    A(f's_cbranch_scc0 {N}_w1')
    A(f'v_cmp_gt_u32 vcc, 32, v{VL}')
    A(f's_and_b64 exec, exec, vcc')
    A(f'buffer_load_dword v{VT2}, v{VT}, s[24:27], s{S_T} offen')
    A(f'buffer_load_dword v{VT2+1}, v{VT}, s[28:31], s{S_T} offen')
    A(f's_mov_b64 exec, -1')
    A(f's_branch {N}_w2')
    A.label(f'{N}_w1')
    A(f's_sub_u32 s{S_T}, s{S_WV}, 1')
    A(f's_and_b32 s{S_T}, s{S_T}, 1')
    A(f's_lshl_b32 s{S_T}, s{S_T}, 13')
    A(f's_add_u32 s{S_T2}, s{S_T2}, s{S_T}')
    A(f'buffer_load_dword v{VT2}, v{VT}, s[32:35], s{S_T2} offen')
    A(f'buffer_load_dword v{VT2+1}, v{VT}, s[32:35], s{S_T2} offen')
    A.label(f'{N}_w2')
    lane_setup(A, VL, VT, V_TR, V_BL)
    A(f'v_add_u32 v{VVB}, {RING0 + 2048}, v{V_TR}')
    A(f'v_add_u32 v{V_TR}, s{S_WB}, v{V_TR}')
    A(f's_movk_i32 s{S_T3}, 1024')
    wdma_voff(A, VDOa, VL, VT, S_T3)
    A(f'v_add_u32 v{VDOb}, {8*1024}, v{VDOa}')
    A(f's_lshl_b32 s{S_T}, s{S_WV}, 8')
    A(f's_add_u32 s{S_OO}, s{S_OO}, s{S_T}')
    A(f's_movk_i32 s{S_T3}, 256')
    wdma_voff(A, VDVa, VL, VT, S_T3)
    A(f's_lshr_b32 s{S_T}, s{S_WV}, 1')
    A(f's_lshl_b32 s{S_T}, s{S_T}, 12')
    A(f's_and_b32 s{S_T2}, s{S_WV}, 1')
    A(f's_lshl_b32 s{S_T2}, s{S_T2}, 7')
    A(f's_add_u32 s{S_T}, s{S_T}, s{S_T2}')
    A(f'v_add_u32 v{VDVa}, s{S_T}, v{VDVa}')
    A(f'v_add_u32 v{VDVb}, {8*256}, v{VDVa}')
    A(f'v_bfe_u32 v{VT}, v{VL}, 2, 2')
    A(f'v_bfe_u32 v{VT+1}, v{VL}, 4, 1')
    A(f'v_lshl_add_u32 v{VT}, v{VT+1}, 3, v{VT}')
    A(f'v_bfe_u32 v{VT+1}, v{VL}, 5, 1')
    A(f'v_lshl_add_u32 v{VT}, v{VT+1}, 2, v{VT}')
    A(f'v_lshlrev_b32 v{VDK}, 8, v{VT}')
    A(f'v_lshrrev_b32 v{VT}, 4, v{VL}')
    A(f'v_xor_b32 v{VT}, v{VT}, v{VL}')
    A(f'v_and_b32 v{VT}, 3, v{VT}')
    A(f'v_lshl_add_u32 v{VDK}, v{VT}, 4, v{VDK}')
    A(f's_lshl_b32 s{S_T}, s{S_WV}, 6')
    A(f'v_add_u32 v{VDK}, s{S_T}, v{VDK}')
    A(f'v_bfe_u32 v{VT}, v{VL}, 4, 1')
    A(f'v_lshlrev_b32 v{VKB}, 10, v{VT}')
    A(f'v_and_b32 v{VT}, 15, v{VL}')
    A(f'v_lshl_add_u32 v{VKB}, v{VT}, 6, v{VKB}')
    A(f'v_bfe_u32 v{VT}, v{VL}, 2, 2')
    A(f'v_lshrrev_b32 v{VT+1}, 5, v{VL}')
    A(f'v_xor_b32 v{VT}, v{VT}, v{VT+1}')
    A(f'v_lshl_add_u32 v{VKB}, v{VT}, 4, v{VKB}')
    A(f'v_add_u32 v{VKB}, {RING0}, v{VKB}')
    A(f'v_lshrrev_b32 v{VT}, 4, v{VL}')
    A(f'v_lshlrev_b32 v{VX}, 14, v{VT}')
    A(f'v_and_b32 v{VT}, 15, v{VL}')
    A(f'v_lshl_add_u32 v{VX}, v{VT}, 4, v{VX}')
    A(f's_lshl_b32 s{S_T}, s{S_WV}, 12')
    A(f'v_add_u32 v{VX}, s{S_T}, v{VX}')
    A(f's_mov_b32 s{S_FB}, 0')
    for j in range(8):
        A(f'v_add_f32 v{C1+j}, 1.0, v{C1+j}')
    for j in range(4):
        round2_bf16(A, C1 + 2 * j, C1 + 2 * j + 1, C1 + 2 * j, C1 + 2 * j + 1, VT)
    for j in range(8):
        A(f'v_mul_f32 v{C1+j}, {hexf(QSCALE)}, v{C1+j}')
        A(f'v_mul_f32 v{C2+j}, {hexf(QSCALE)}, v{C2+j}')
    A('s_waitcnt lgkmcnt(0)')
    U = 48
    for r in range(16):
        u = U + 8 * (r % 2); o = 64 + 4 * (r % 2)
        nm = 72 + 2 * (r % 2)
        A(f'v_mov_b32 v{nm}, s{S_ST+2*r}')
        A(f'v_mul_f32 v{nm}, s{S_ST+2*r+1}, v{nm}')
        for j in range(4):
            unpack(A, u + 2 * j, u + 2 * j + 1, XR + 4 * r + j)
        for j in range(4):
            A(f'v_pk_fma_f32 v[{u+2*j}:{u+2*j+1}], v[{u+2*j}:{u+2*j+1}], s[{S_ST+2*r}:{S_ST+2*r+1}], v[{nm}:{nm+1}] op_sel:[0,1,0] op_sel_hi:[1,1,0] neg_lo:[0,0,1] neg_hi:[0,0,1]')
        for j in range(4):
            A(f'v_pk_fma_f32 v[{u+2*j}:{u+2*j+1}], v[{u+2*j}:{u+2*j+1}], v[{C1+2*j}:{C1+2*j+1}], v[{C2+2*j}:{C2+2*j+1}]')
        for j in range(4):
            A(f'v_cvt_pk_bf16_f32 v{o+j}, v{u+2*j}, v{u+2*j+1}')
        A(f'v_xor_b32 v{VT+(r%2)}, {r*16}, v{VX}')
        A(f'ds_write_b128 v{VT+(r%2)}, v[{o}:{o+3}] offset:{r*256}')
    A(f's_mov_b32 s{S_BF}, 0')
    A(f'v_mov_b32 v{V_BC}, v{V_BL}')
    A(f'v_mov_b32 v{V_TRC}, v{V_TR}')
    A('s_waitcnt vmcnt(22) lgkmcnt(0)')
    A('s_barrier')
    for x in G.reads(4, 0, 0): A(x)
    def gstep(set_, issue, wait, last=False, czero=False, extra=None):
        m = G.mfmas(4, set_, ACC, cinit=(lambda mb, nb: '0') if czero else None)
        f = [[] for _ in range(8)]
        if not last:
            f[0] += G.rd_adv() + [f's_waitcnt vmcnt({wait})']
            f[1] += G.b_adv()
            rd = G.reads(4, 1 - set_, 0)
            trs = [r for r in rd if 'tr_b16' in r]; bs = [r for r in rd if 'b128' in r]
            f[1] += [trs[0]]
            f[2] += [trs[1], bs[0], bs[1]]
            f[3] += trs[2:5]
            f[4] += trs[5:8]
        if issue is not None:
            f[6] += issue[0] + issue[1]
            f[7] += issue[2] + issue[3]
            f[5] += []
            f[7] += wadv
        if extra is not None:
            for k, xs in extra.items(): f[k] += xs
        return interleave(m, f)
    def loop_tail(label, n):
        return [f's_add_u32 s{S_CNT}, s{S_CNT}, 1', f's_cmp_lt_u32 s{S_CNT}, {n}', f's_cbranch_scc1 {label}']
    for x in gstep(0, slot_q(), 18, czero=True): A(x)
    for x in gstep(1, slot_q(), 18): A(x)
    A(f's_mov_b32 s{S_CNT}, 0')
    segs.append(('lin', A.items))
    body = gstep(0, slot_q(), 16) + gstep(1, slot_q(), 16) + loop_tail(f'{N}_p1', 12)
    segs.append(('loop', f'{N}_p1', I(body)))
    A = Asm()
    for t in range(26, 32):
        for x in gstep(t % 2, slot_kv(), 16, last=(t == 31)): A(x)
    for nb in range(2):
        for mb in range(4):
            d = ACC + 16 * (2 * mb + nb)
            for r in range(8):
                A(f'v_cvt_pk_bf16_f32 v{TMP+r}, v{d+2*r}, v{d+2*r+1}')
            for r in range(8):
                A(f'v_accvgpr_write_b32 a{AQ+32*nb+8*mb+r}, v{TMP+r}')
    A.label(f'{N}_p2')
    st = lambda j: ((j + 2) % 6) * STAGE
    def kreads():
        return [f'ds_read_b128 a[{AK+4*t}:{AK+4*t+3}], v{VKC0 if t % 2 == 0 else VKC1} offset:{(t//2)*4096}' for t in range(8)]
    def vreads():
        r = []
        for t2 in range(2):
            for db in range(4):
                for j in range(2):
                    d = AV + 4 * (4 * t2 + db) + 2 * j
                    r.append(f'ds_read_b64_tr_b16 a[{d}:{d+1}], v{VVC} offset:{(2*t2+db//2)*4096 + j*512 + (db%2)*256}')
        return r
    def qk(nb, czero=False):
        out = []
        for t in range(8):
            c = ('0' if czero else f'v[{NM[nb]}:{NM[nb]+15}]') if t == 0 else f'v[{SB[nb]}:{SB[nb]+15}]'
            out.append(f'v_mfma_f32_32x32x16_bf16 v[{SB[nb]}:{SB[nb]+15}], a[{AK+4*t}:{AK+4*t+3}], a[{AQ+32*nb+4*t}:{AQ+32*nb+4*t+3}], {c}')
        return out
    def pv(nb, czero=False):
        out = []
        for t2 in range(2):
            for db in range(4):
                d = ACC + 16 * (2 * db + nb)
                c = '0' if (czero and t2 == 0) else f'v[{d}:{d+15}]'
                out.append(f'v_mfma_f32_32x32x16_bf16 v[{d}:{d+15}], a[{AV+4*(4*t2+db)}:{AV+4*(4*t2+db)+3}], v[{PB[nb]+4*t2}:{PB[nb]+4*t2+3}], {c}')
        return out
    def softmax(nb, first=False):
        S_ = SB[nb]; P_ = PB[nb]; L = VL0 + nb
        ex = [f'v_exp_f32 v{S_+r}, v{S_+r}' for r in range(16)]
        out = [ex[0], ex[1]]
        for j in range(8):
            if j < 7: out += [ex[2*j+2], ex[2*j+3]]
            if first and j == 0:
                out.append(f'v_add_f32 v{L}, v{S_}, v{S_+1}')
            else:
                out.append(f'v_add_f32 v{L}, v{L}, v{S_+2*j}')
                out.append(f'v_add_f32 v{L}, v{L}, v{S_+2*j+1}')
            out.append(f'v_cvt_pk_bf16_f32 v{P_+j}, v{S_+2*j}, v{S_+2*j+1}')
        return out
    def maxchain(nb):
        S_ = SB[nb]; M = TMP + 2 * nb; out = []
        out.append(f'v_max3_f32 v{M}, v{S_}, v{S_+1}, v{S_+2}')
        for r in range(3, 15, 2):
            out.append(f'v_max3_f32 v{M}, v{M}, v{S_+r}, v{S_+r+1}')
        out.append(f'v_max_f32 v{M}, v{M}, v{S_+15}')
        out.append(f'v_mov_b32 v{M+1}, v{M}')
        out.append(f'v_permlane32_swap_b32 v{M+1}, v{M}')
        out.append(f'v_max_f32 v{M}, v{M}, v{M+1}')
        out.append(f'v_add_f32 v{M}, {hexf(OFFSET)}, v{M}')
        out.append(f's_cmp_eq_u32 s{S_FB}, 1')
        out.append(f's_cselect_b64 vcc, -1, 0')
        out.append(f'v_cndmask_b32 v{M}, v{M}, v{VM0+nb}, vcc')
        out.append(f'v_sub_f32 v{NM[nb]}, 0, v{M}')
        for r in range(16):
            out.append(f'v_sub_f32 v{S_+r}, v{S_+r}, v{M}')
        for r in range(1, 16):
            out.append(f'v_mov_b32 v{NM[nb]+r}, v{NM[nb]}')
        return out
    A(f'v_add_u32 v{VKC0}, {st(0)}, v{VKB}')
    A(f'v_xor_b32 v{VKC1}, 32, v{VKC0}')
    A('s_waitcnt vmcnt(16)')
    A('s_barrier')
    for x in kreads(): A(x)
    for x in qk(0, czero=True): A(x)
    f, _ = fill(8, [[] for _ in range(8)], [])
    mc = maxchain(0)
    f = [[] for _ in range(8)]
    g2, _ = fill(6, [[] for _ in range(6)], mc)
    for k in range(6): f[k + 2] = g2[k]
    for x in interleave(qk(1, czero=True), f): A(x)
    A(f'v_add_u32 v{VKC0}, {st(1)}, v{VKB}')
    A(f'v_xor_b32 v{VKC1}, 32, v{VKC0}')
    for x in kreads(): A(x)
    for x in softmax(0, first=True): A(x)
    for x in maxchain(1): A(x)
    A(f's_mov_b32 s{S_SV}, {st(0)}')
    A(f's_mov_b32 s{S_SM}, {st(1)}')
    A(f's_mov_b32 s{S_SK}, {st(2)}')
    A(f'v_add_u32 v{VVC}, s{S_SV}, v{VVB}')
    def iteration(issue, first=False, lastk=False, tail=None):
        m = qk(0) + pv(0, czero=first) + qk(1) + pv(1, czero=first)
        fx = [[] for _ in range(16)]
        vr = vreads()
        for k in range(16): fx[min(k // 3, 5)].append(vr[k])
        fx[7] += ['s_waitcnt vmcnt(12) lgkmcnt(0)', 's_barrier']
        if issue is not None:
            iss = [[x.replace(f's{S_WR},', f's{S_SV},') for x in g] for g in issue]
            for k in range(4): fx[9 + k] += iss[k]
        g12, l1 = fill(16, fx, softmax(1, first=first))
        fx = [[] for _ in range(16)]
        fx[0] += [f'v_add_u32 v{VKC0}, s{S_SK}, v{VKB}', f'v_xor_b32 v{VKC1}, 32, v{VKC0}']
        fx[2] += [f's_mov_b32 s{S_SV}, s{S_SM}', f's_mov_b32 s{S_SM}, s{S_SK}']
        fx[3] += G.ring_adv(S_SK, 0, NST * STAGE)
        fx[4] += [f'v_add_u32 v{VVC}, s{S_SV}, v{VVB}']
        if not lastk:
            kr = kreads()
            for k in range(8): fx[8 + k // 2].append(kr[k])
        if tail: fx[14] += tail[:2]
        g34, l2 = fill(16, fx, softmax(0))
        if tail: g34[15] += tail[2:]
        if verbose: print('levels', l1, l2)
        return interleave(m, g12 + g34)
    for x in iteration(slot_kv(), first=True): A(x)
    A(f's_mov_b32 s{S_CNT}, 0')
    segs.append(('lin', A.items))
    segs.append(('loop', f'{N}_p2a', I(iteration(slot_kv(), tail=loop_tail(f'{N}_p2a', 9)))))
    A = Asm(); A(f's_mov_b32 s{S_CNT}, 0'); segs.append(('lin', A.items))
    segs.append(('loop', f'{N}_p2b', I(iteration(slot_o(), tail=loop_tail(f'{N}_p2b', 4)))))
    A = Asm()
    for x in iteration(slot_o(), lastk=True): A(x)
    for x in vreads(): A(x)
    sm = softmax(1)
    for x in sm[:12]: A(x)
    g, _ = fill(8, [[] for _ in range(8)], sm[12:])
    for x in interleave(pv(0), g): A(x)
    def lfin(nb):
        L = VL0 + nb; T = TMP + 8 + nb
        return [f'v_mov_b32 v{T}, v{L}', f'v_permlane32_swap_b32 v{T}, v{L}', f'v_add_f32 v{L}, v{L}, v{T}',
                f'v_rcp_f32 v{T}, v{L}', f'v_cmp_gt_f32 vcc, {hexf(LMAX)}, v{L}', f'v_mov_b32 v{L}, 0x7fc00000',
                f'v_cndmask_b32 v{L}, v{L}, v{T}, vcc']
    def onorm(nb):
        out = []
        L = VL0 + nb
        k = 0
        for db in range(4):
            d = ACC + 16 * (2 * db + nb)
            for a2 in range(2):
                o = TMP + 4 * (k % 2); k += 1
                for r in range(8):
                    out.append(f'v_mul_f32 v{d+8*a2+r}, v{L}, v{d+8*a2+r}')
                for r in range(4):
                    out.append(f'v_cvt_pk_bf16_f32 v{o+r}, v{d+8*a2+2*r}, v{d+8*a2+2*r+1}')
                out.append(f'v_xor_b32 v{VT+(k%2)}, {(4*db+2*a2)*16}, v{VX}')
                out.append(f'ds_write_b128 v{VT+(k%2)}, v[{o}:{o+3}] offset:{nb*8192}')
        return out
    A(f's_lshl_b32 s{S_T}, s{S_WV}, 14')
    A(f'v_add_u32 v{VX}, s{S_T}, v{V_BL}')
    on0 = lfin(0) + onorm(0)
    g = [[] for _ in range(8)]
    g2, _ = fill(6, [[] for _ in range(6)], on0[:36])
    g[0] = on0[:0]
    for k in range(6): g[k + 2] = g2[k]
    for x in interleave(pv(1), g): A(x)
    for x in on0[36:]: A(x)
    for x in lfin(1) + onorm(1): A(x)
    A(f's_mov_b32 s{S_BF}, 0')
    A(f'v_mov_b32 v{V_BC}, v{V_BL}')
    A(f'v_mov_b32 v{V_TRC}, v{V_TR}')
    A(f's_mov_b32 s{S_RD}, 0')
    A(f's_mov_b32 s{S_WR}, {5*STAGE}')
    A('s_waitcnt vmcnt(16) lgkmcnt(0)')
    A('s_barrier')
    for x in G.reads(4, 0, 0): A(x)
    for g in slot_o():
        for x in g: A(x)
    for x in wadv: A(x)
    for x in gstep(0, slot_o(), 16, czero=True): A(x)
    for x in gstep(1, slot_o(), 16): A(x)
    A(f's_mov_b32 s{S_CNT}, 0')
    segs.append(('lin', A.items))
    body = gstep(0, slot_o(), 16) + gstep(1, slot_o(), 16) + loop_tail(f'{N}_p3', 12)
    segs.append(('loop', f'{N}_p3', I(body)))
    A = Asm()
    for t in range(26, 32):
        for x in gstep(t % 2, None, max(0, (31 - (t + 1)) * 4), last=(t == 31)): A(x)
    A(f's_lshl_b32 s{S_T}, s{S_G}, 21')
    A(f's_lshl_b32 s{S_T2}, s{S_RB}, 16')
    A(f's_add_u32 s{S_T}, s{S_T}, s{S_T2}')
    A(f's_lshl_b32 s{S_T2}, s{S_WV}, 14')
    A(f's_add_u32 s{S_T}, s{S_T}, s{S_T2}')
    k = 0
    for mb in range(4):
        for nb in range(2):
            d = ACC + 16 * (2 * mb + nb)
            for a2 in range(2):
                o = 32 + 4 * (k % 16); k += 1
                for r in range(4):
                    A(f'v_cvt_pk_bf16_f32 v{o+r}, v{d+8*a2+2*r}, v{d+8*a2+2*r+1}')
                A(f'buffer_store_dwordx4 v[{o}:{o+3}], v{VO}, s[40:43], s{S_T} offen offset:{a2*2048+nb*1024}')
        A(f's_add_u32 s{S_T}, s{S_T}, 4096')
    A.label(f'{N}_end')
    A('s_endpgm')
    segs.append(('lin', A.items))
    body = finish_loops(segs, verbose=verbose)
    return dict(name='k2_kernel', grid=256, block=256, lds=163840, body=body, vgpr=512, sgpr=100, accum=256)

if __name__ == '__main__':
    from k0 import build_k0
    from k3 import build_k3, build_k5
    from k4 import build_k4
    open('../probe/full1.s', 'w').write(make_file([build_k0(), build_k2(True), build_k3(), build_k4(), build_k5()]))
```

```python
from common import *
from k0 import ln_finish

def part_addr(A, N):
    A('v_and_b32 v4, 7, v0')
    A('v_lshrrev_b32 v5, 3, v0')
    A('s_lshr_b32 s40, s2, 3')
    A('s_lshl_b32 s40, s40, 16')
    A('s_bfe_u32 s41, s2, 0x10002')
    A('s_lshl_b32 s41, s41, 10')
    A('s_add_u32 s40, s40, s41')
    A('s_and_b32 s41, s2, 3')
    A('s_lshl_b32 s41, s41, 7')
    A('s_add_u32 s40, s40, s41')
    A('v_lshrrev_b32 v6, 1, v5')
    A('v_lshlrev_b32 v6, 11, v6')
    A('v_and_b32 v7, 1, v5')
    A('v_lshl_add_u32 v6, v7, 9, v6')
    A('v_lshl_add_u32 v6, v4, 4, v6')
    A('v_add_u32 v1, s40, v6')
    A('s_lshl_b32 s41, s2, 13')
    A('v_lshlrev_b32 v2, 10, v4')
    A('v_lshl_add_u32 v2, v5, 4, v2')
    A('v_add_u32 v2, s41, v2')
    A('v_lshlrev_b32 v3, 5, v5')

def sum_partials(A, npart, srd_p, base, acc):
    for g in range(npart):
        A(f's_mov_b32 s42, {hex(g * 0x200000)}')
        A(f's_mov_b32 s43, {hex(g * 0x200000 + 32768)}')
        A(f'buffer_load_dwordx4 v[{base+8*g}:{base+8*g+3}], v1, s[{srd_p}:{srd_p+3}], s42 offen')
        A(f'buffer_load_dwordx4 v[{base+8*g+4}:{base+8*g+7}], v1, s[{srd_p}:{srd_p+3}], s43 offen')

def accum_partials(A, npart, base, acc, t0):
    for g in range(npart):
        for j in range(8):
            if g == 0:
                unpack(A, acc + 2 * j, acc + 2 * j + 1, base + j)
            else:
                unpack(A, t0, t0 + 1, base + 8 * g + j)
                A(f'v_add_f32 v{acc+2*j}, v{acc+2*j}, v{t0}')
                A(f'v_add_f32 v{acc+2*j+1}, v{acc+2*j+1}, v{t0+1}')

def load_vec(A, dst, idx, srd_ws):
    o = idx * 2048
    A(f's_mov_b32 s42, {o}')
    A(f'buffer_load_dwordx4 v[{dst}:{dst+3}], v3, s[{srd_ws}:{srd_ws+3}], s42 offen')
    A(f'buffer_load_dwordx4 v[{dst+4}:{dst+7}], v3, s[{srd_ws}:{srd_ws+3}], s42 offen offset:16')
    A(f'buffer_load_dwordx4 v[{dst+8}:{dst+11}], v3, s[{srd_ws}:{srd_ws+3}], s42 offen offset:1024')
    A(f'buffer_load_dwordx4 v[{dst+12}:{dst+15}], v3, s[{srd_ws}:{srd_ws+3}], s42 offen offset:1040')

def round16(A, r0, tmp):
    for j in range(8):
        round2_bf16(A, r0 + 2 * j, r0 + 2 * j + 1, r0 + 2 * j, r0 + 2 * j + 1, tmp + (j % 4))

def wg_rowsum(A, reg, tmp, ldsoff):
    A(f'v_add_f32 v{reg}, v{reg}, v{reg} row_ror:8 row_mask:0xf bank_mask:0xf')
    wave_allsum(A, [reg], [tmp], steps=())
    A(f'ds_write_b32 v8, v{reg} offset:{ldsoff}')
    A('s_waitcnt lgkmcnt(0)')
    A('s_barrier')
    for w in range(4):
        A(f'ds_read_b32 v{tmp+w}, v9 offset:{ldsoff+32*w}')
    A(f'v_add_f32 v{tmp}, v{tmp}, v{tmp+1}')
    A(f'v_add_f32 v{tmp+2}, v{tmp+2}, v{tmp+3}')
    A(f'v_add_f32 v{reg}, v{tmp}, v{tmp+2}')

def build_k3():
    A = Asm(); N = 'k3'
    A(f's_load_dwordx2 s[4:5], s[0:1], {KA_X}')
    A(f's_load_dwordx2 s[12:13], s[0:1], {KA_WS}')
    A('s_cmp_ge_u32 s2, 256')
    A(f's_cbranch_scc1 {N}_end')
    part_addr(A, N)
    A('v_lshrrev_b32 v8, 6, v0')
    A('v_lshlrev_b32 v8, 5, v8')
    A('v_lshl_add_u32 v8, v4, 2, v8')
    A('v_lshlrev_b32 v9, 2, v4')
    A('s_waitcnt lgkmcnt(0)')
    srd(A, 16, 4, 2048 * 1024)
    srd(A, 20, 12, 0x1000000, WS_PA)
    srd(A, 24, 12, 0x100000)
    srd(A, 28, 12, 0x200000, WS_X2)
    srd(A, 32, 12, 0x200000, WS_H2)
    PB = 16
    sum_partials(A, 8, 20, PB, None)
    A('buffer_load_dwordx4 v[80:83], v2, s[16:19], 0 offen')
    A('buffer_load_dwordx4 v[84:87], v2, s[16:19], 0 offen offset:512')
    load_vec(A, 96, 2, 24)
    load_vec(A, 112, 4, 24)
    load_vec(A, 128, 3, 24)
    ACC = 144
    accum_partials(A, 8, PB, ACC, 10)
    round16(A, ACC, 10)
    for j in range(16):
        A(f'v_mul_f32 v{ACC+j}, v{96+j}, v{ACC+j}')
    round16(A, ACC, 10)
    for j in range(8):
        unpack(A, 10, 11, 80 + j)
        A(f'v_add_f32 v{ACC+2*j}, v{ACC+2*j}, v10')
        A(f'v_add_f32 v{ACC+2*j+1}, v{ACC+2*j+1}, v11')
    for j in range(8):
        A(f'v_cvt_pk_bf16_f32 v{16+j}, v{ACC+2*j}, v{ACC+2*j+1}')
    A('buffer_store_dwordx4 v[16:19], v2, s[28:31], 0 offen')
    A('buffer_store_dwordx4 v[20:23], v2, s[28:31], 0 offen offset:512')
    for j in range(8):
        unpack(A, ACC + 2 * j, ACC + 2 * j + 1, 16 + j)
    A(f'v_add_f32 v30, v{ACC}, v{ACC+1}')
    for j in range(2, 16):
        A(f'v_add_f32 v30, v30, v{ACC+j}')
    wg_rowsum(A, 30, 32, 0)
    A(f'v_mul_f32 v30, {hexf(1/512)}, v30')
    for j in range(16):
        A(f'v_sub_f32 v{40+j}, v{ACC+j}, v30')
    A('v_mul_f32 v31, v40, v40')
    for j in range(1, 16):
        A(f'v_fmac_f32 v31, v{40+j}, v{40+j}')
    wg_rowsum(A, 31, 32, 128)
    ln_finish(A, [30], [31])
    for j in range(16):
        A(f'v_sub_f32 v{ACC+j}, v{ACC+j}, v30')
    round16(A, ACC, 10)
    for j in range(16):
        A(f'v_mul_f32 v{ACC+j}, v{ACC+j}, v31')
    round16(A, ACC, 10)
    for j in range(16):
        A(f'v_add_f32 v{112+j}, 1.0, v{112+j}')
    round16(A, 112, 10)
    for j in range(16):
        A(f'v_mul_f32 v{ACC+j}, v{ACC+j}, v{112+j}')
    round16(A, ACC, 10)
    for j in range(16):
        A(f'v_add_f32 v{ACC+j}, v{ACC+j}, v{128+j}')
    for j in range(8):
        A(f'v_cvt_pk_bf16_f32 v{40+j}, v{ACC+2*j}, v{ACC+2*j+1}')
    A('buffer_store_dwordx4 v[40:43], v2, s[32:35], 0 offen')
    A('buffer_store_dwordx4 v[44:47], v2, s[32:35], 0 offen offset:512')
    A.label(f'{N}_end')
    A('s_endpgm')
    return dict(name='k3_kernel', grid=256, block=256, lds=256, body=finish(A), vgpr=160, sgpr=48, accum=160)

def build_k5():
    A = Asm(); N = 'k5'
    A(f's_load_dwordx2 s[4:5], s[0:1], {KA_B2}')
    A(f's_load_dwordx2 s[6:7], s[0:1], {KA_OUT}')
    A(f's_load_dwordx2 s[12:13], s[0:1], {KA_WS}')
    A('s_cmp_ge_u32 s2, 256')
    A(f's_cbranch_scc1 {N}_end')
    part_addr(A, N)
    A('v_lshlrev_b32 v8, 4, v5')
    A('s_waitcnt lgkmcnt(0)')
    srd(A, 16, 4, 1024)
    srd(A, 20, 12, 0x1000000, WS_PF)
    srd(A, 24, 12, 0x100000)
    srd(A, 28, 12, 0x200000, WS_X2)
    srd(A, 32, 6, 0x200000)
    PB = 16
    sum_partials(A, 7, 20, PB, None)
    A('buffer_load_dwordx4 v[80:83], v2, s[28:31], 0 offen')
    A('buffer_load_dwordx4 v[84:87], v2, s[28:31], 0 offen offset:512')
    A('buffer_load_dwordx4 v[88:91], v8, s[16:19], 0 offen')
    A('buffer_load_dwordx4 v[92:95], v8, s[16:19], 0 offen offset:512')
    load_vec(A, 96, 5, 24)
    ACC = 112
    accum_partials(A, 7, PB, ACC, 10)
    round16(A, ACC, 10)
    for j in range(8):
        unpack(A, 10, 11, 88 + j)
        A(f'v_add_f32 v{ACC+2*j}, v{ACC+2*j}, v10')
        A(f'v_add_f32 v{ACC+2*j+1}, v{ACC+2*j+1}, v11')
    round16(A, ACC, 10)
    for j in range(16):
        A(f'v_mul_f32 v{ACC+j}, v{96+j}, v{ACC+j}')
    round16(A, ACC, 10)
    for j in range(8):
        unpack(A, 10, 11, 80 + j)
        A(f'v_add_f32 v{ACC+2*j}, v{ACC+2*j}, v10')
        A(f'v_add_f32 v{ACC+2*j+1}, v{ACC+2*j+1}, v11')
    for j in range(8):
        A(f'v_cvt_pk_bf16_f32 v{16+j}, v{ACC+2*j}, v{ACC+2*j+1}')
    A('buffer_store_dwordx4 v[16:19], v2, s[32:35], 0 offen')
    A('buffer_store_dwordx4 v[20:23], v2, s[32:35], 0 offen offset:512')
    A.label(f'{N}_end')
    A('s_endpgm')
    return dict(name='k5_kernel', grid=256, block=256, lds=0, body=finish(A), vgpr=128, sgpr=48, accum=128)

if __name__ == '__main__':
    from k0 import build_k0
    open('../probe/k035.s', 'w').write(make_file([build_k0(), build_k3(), build_k5()]))
```

```python
from gemm import *

def build_k4(verbose=False):
    N = 'k4'
    P = Asm()
    S_WV = 36; S_RB = 37; S_FS = 38; S_RD = 39; S_WR = 40; S_BF = 41; S_T = 42; S_WB = 43; S_O1 = 44; S_O2 = 45; S_CNT = 46; S_T2 = 47; S_STR = 48
    VL = 1; VT = 2; V_TR = 4; V_TRC = 5; V_BL = 6; V_BC = 7; VD1a = 8; VD1b = 9; VD2a = 10; VD2b = 11; VH = 12; VO = 13; VW = 14
    ACC = 32
    VB1 = 160
    G = Gemm(V_TR, V_TRC, V_BL, V_BC, S_RD, S_WR, S_BF, S_T, FA=0, FB=32)
    A = P
    A(f's_load_dwordx4 s[4:7], s[0:1], {KA_W1}')
    A(f's_load_dwordx2 s[8:9], s[0:1], {KA_W2}')
    A(f's_load_dwordx2 s[12:13], s[0:1], {KA_WS}')
    A('s_cmp_ge_u32 s2, 256')
    A(f's_cbranch_scc1 {N}_end')
    A(f's_and_b32 s{S_FS}, s2, 7')
    A(f's_cmp_eq_u32 s{S_FS}, 7')
    A(f's_cbranch_scc1 {N}_end')
    A(f's_lshr_b32 s{S_RB}, s2, 3')
    A(f'v_and_b32 v{VL}, 63, v0')
    A(f'v_lshrrev_b32 v{VT}, 6, v0')
    A(f'v_readfirstlane_b32 s{S_WV}, v{VT}')
    lane_setup(A, VL, VT, V_TR, V_BL)
    A(f's_lshl_b32 s{S_WB}, s{S_WV}, 12')
    A(f's_add_u32 s{S_WB}, s{S_WB}, {RING0}')
    A(f'v_add_u32 v{V_TR}, s{S_WB}, v{V_TR}')
    A(f's_movk_i32 s{S_STR}, 3584')
    wdma_voff(A, VD1a, VL, VT, S_STR)
    A(f'v_add_u32 v{VD1b}, {8*3584}, v{VD1a}')
    A(f's_movk_i32 s{S_STR}, 1024')
    wdma_voff(A, VD2a, VL, VT, S_STR)
    A(f'v_add_u32 v{VD2b}, {8*1024}, v{VD2a}')
    A(f'v_lshrrev_b32 v{VT}, 4, v{VL}')
    A(f's_lshl_b32 s{S_T}, s{S_WV}, 2')
    A(f'v_add_u32 v{VT+1}, s{S_T}, v{VT}')
    A(f'v_and_b32 v{VH}, 15, v{VL}')
    A(f'v_xor_b32 v{VH}, v{VH}, v{VT+1}')
    A(f'v_lshlrev_b32 v{VH}, 4, v{VH}')
    A(f'v_lshl_add_u32 v{VH}, v{VT}, 10, v{VH}')
    A(f'v_lshrrev_b32 v{VT}, 5, v{VL}')
    A(f'v_lshlrev_b32 v{VW}, 4, v{VT}')
    A(f'v_lshlrev_b32 v{VO}, 4, v{VL}')
    A('s_waitcnt lgkmcnt(0)')
    srd(A, 16, 4, 512 * 3584)
    srd(A, 20, 6, 3584)
    srd(A, 24, 8, 1792 * 1024)
    srd(A, 28, 12, 0x200000, WS_H2)
    srd(A, 32, 12, 0x1000000, WS_PF)
    A(f's_lshl_b32 s{S_T}, s{S_FS}, 9')
    A(f's_lshl_b32 s{S_T2}, s{S_WV}, 7')
    A(f's_add_u32 s{S_O1}, s{S_T}, s{S_T2}')
    for q in range(4):
        A(f'buffer_load_dwordx4 v[{VB1+4*q}:{VB1+4*q+3}], v{VW}, s[20:23], s{S_O1} offen offset:{32*q}')
    A(f's_lshl_b32 s{S_T}, s{S_RB}, 16')
    A(f's_lshl_b32 s{S_T2}, s{S_WV}, 12')
    A(f's_add_u32 s{S_T}, s{S_T}, s{S_T2}')
    A(f's_lshl_b32 s{S_T2}, s{S_WV}, 10')
    def h2_piece(sub, qq):
        return [f's_add_u32 m0, s{S_T2}, {sub*16384 + qq*4096 - sub*256}',
                f's_add_u32 s{S_CNT}, s{S_T}, {qq*16384}',
                f'buffer_load_dwordx4 v{VH}, s[28:31], s{S_CNT} offen offset:{sub*256} lds']
    for sub in range(4):
        for qq in range(4):
            for x in h2_piece(sub, qq): A(x)
    A(f's_mov_b32 s{S_WR}, 0')
    A(f's_mov_b32 s{S_RD}, 0')
    A(f's_lshl_b32 s{S_O2}, s{S_FS}, 18')
    A(f's_lshl_b32 s{S_T}, s{S_WV}, 8')
    A(f's_add_u32 s{S_O2}, s{S_O2}, s{S_T}')
    def slot_w1():
        g = []
        g.append([f's_add_u32 m0, s{S_WR}, s{S_WB}', f'buffer_load_dwordx4 v{VD1a}, s[16:19], s{S_O1} offen lds'])
        g.append([f's_add_u32 m0, m0, 1024', f'buffer_load_dwordx4 v{VD1b}, s[16:19], s{S_O1} offen lds', f's_add_u32 s{S_O1}, s{S_O1}, {16*3584}'])
        g.append([f's_add_u32 m0, m0, 1024', f'buffer_load_dwordx4 v{VD1a}, s[16:19], s{S_O1} offen lds'])
        g.append([f's_add_u32 m0, m0, 1024', f'buffer_load_dwordx4 v{VD1b}, s[16:19], s{S_O1} offen lds', f's_add_u32 s{S_O1}, s{S_O1}, {16*3584}'] + G.ring_adv(S_WR, 0, NST * STAGE))
        return g
    def slot_w2():
        g = []
        g.append([f's_add_u32 m0, s{S_WR}, s{S_WB}', f'buffer_load_dwordx4 v{VD2a}, s[24:27], s{S_O2} offen lds'])
        g.append([f's_add_u32 m0, m0, 1024', f'buffer_load_dwordx4 v{VD2b}, s[24:27], s{S_O2} offen lds'])
        g.append([f's_add_u32 m0, m0, {1024-128}', f'buffer_load_dwordx4 v{VD2a}, s[24:27], s{S_O2} offen offset:128 lds'])
        g.append([f's_add_u32 m0, m0, 1024', f'buffer_load_dwordx4 v{VD2b}, s[24:27], s{S_O2} offen offset:128 lds', f's_add_u32 s{S_O2}, s{S_O2}, {16*1024}'] + G.ring_adv(S_WR, 0, NST * STAGE))
        return g
    for sl in range(6):
        for g in slot_w1():
            for x in g: A(x)
    for mb in range(2):
        for q in range(8):
            src = VB1 + 8 * mb + q
            d0 = ACC + 16 * (2 * mb) + 2 * q
            unpack(A, d0, d0 + 1, src)
            A(f'v_mov_b32 v{d0+16}, v{d0}')
            A(f'v_mov_b32 v{d0+17}, v{d0+1}')
    A(f's_mov_b32 s{S_BF}, 0')
    A(f'v_mov_b32 v{V_BC}, v{V_BL}')
    A(f'v_mov_b32 v{V_TRC}, v{V_TR}')
    A('s_waitcnt vmcnt(20)')
    A('s_barrier')
    for x in G.reads(2, 0, 0): A(x)
    segs = [('lin', A.items)]
    def f1_slot(issue, last=False, nxt_wait=16):
        it = []
        m0 = G.mfmas(2, 0, ACC)
        f = merge(spread([G.b_adv()], 4, 0, 1), spread([[r] for r in G.reads(2, 1, 2048)], 4, 0, 4))
        it += interleave(m0, f)
        m1 = G.mfmas(2, 1, ACC)
        if not last:
            pre = G.b_adv() + G.rd_adv() + [f's_waitcnt vmcnt({nxt_wait})']
            f = merge(spread([pre], 4, 0, 1), spread([[r] for r in G.reads(2, 0, 0)], 4, 0, 4))
        else:
            f = [[] for _ in range(4)]
        if issue is not None:
            f[2] = f[2] + issue[0] + issue[1]
            f[3] = f[3] + issue[2] + issue[3]
        it += interleave(m1, f)
        return it
    body = f1_slot(slot_w1())
    A2 = Asm(); A2(f's_mov_b32 s{S_CNT}, 0'); segs.append(('lin', A2.items))
    body = body[:-0] if False else body
    body += [f's_add_u32 s{S_CNT}, s{S_CNT}, 1', f's_cmp_lt_u32 s{S_CNT}, 10', f's_cbranch_scc1 {N}_f1']
    segs.append(('loop', f'{N}_f1', I(body)))
    A2 = Asm(); A2(f's_mov_b32 s{S_CNT}, 0'); segs.append(('lin', A2.items))
    body = f1_slot(slot_w2())
    body += [f's_add_u32 s{S_CNT}, s{S_CNT}, 1', f's_cmp_lt_u32 s{S_CNT}, 5', f's_cbranch_scc1 {N}_f1b']
    segs.append(('loop', f'{N}_f1b', I(body)))
    E = Asm()
    for x in f1_slot(slot_w2(), last=True): E(x)
    E('s_barrier')
    E(f's_and_b32 s{S_T}, s{S_WV}, 1')
    E(f's_lshl_b32 s{S_T}, s{S_T}, 7')
    E(f's_lshr_b32 s{S_T2}, s{S_WV}, 1')
    E(f's_lshl_b32 s{S_T2}, s{S_T2}, 14')
    E(f's_or_b32 s{S_T}, s{S_T}, s{S_T2}')
    E(f'v_xor_b32 v{VT}, s{S_T}, v{V_BL}')
    for mb in range(2):
        for a2 in range(2):
            E(f'v_xor_b32 v{16+2*mb+a2}, {(4*mb+2*a2)*16}, v{VT}')
    for mb in range(2):
        for nb in range(2):
            d = ACC + 16 * (2 * mb + nb)
            for r in range(16):
                E(f'v_max_f32 v{d+r}, 0, v{d+r}')
            for r in range(16):
                E(f'v_mul_f32 v{d+r}, v{d+r}, v{d+r}')
            for r in range(8):
                E(f'v_cvt_pk_bf16_f32 v{VB1+r}, v{d+2*r}, v{d+2*r+1}')
            for a2 in range(2):
                E(f'ds_write_b128 v{16+2*mb+a2}, v[{VB1+4*a2}:{VB1+4*a2+3}] offset:{nb*8192}')
    for r in range(128):
        E(f'v_mov_b32 v{ACC+r}, 0')
    E(f's_mov_b32 s{S_BF}, 0')
    E(f'v_mov_b32 v{V_BC}, v{V_BL}')
    for x in G.rd_adv(): E(x)
    E('s_waitcnt vmcnt(20) lgkmcnt(0)')
    E('s_barrier')
    for x in G.reads(4, 0, 0): E(x)
    E(f's_mov_b32 s{S_CNT}, 0')
    segs.append(('lin', E.items))
    def f2_step(set_, issue, wait, last=False):
        m = G.mfmas(4, set_, ACC)
        if not last:
            pre = G.b_adv() + G.rd_adv() + [f's_waitcnt vmcnt({wait})']
            f = merge(spread([pre], 8, 0, 1), spread([[r] for r in G.reads(4, 1 - set_, 0)], 8, 0, 7))
        else:
            f = [[] for _ in range(8)]
        if issue is not None:
            f[6] = f[6] + issue[0] + issue[1]
            f[7] = f[7] + issue[2] + issue[3]
        return interleave(m, f)
    body = f2_step(0, slot_w2(), 16) + f2_step(1, slot_w2(), 16)
    body += [f's_add_u32 s{S_CNT}, s{S_CNT}, 1', f's_cmp_lt_u32 s{S_CNT}, 5', f's_cbranch_scc1 {N}_f2']
    segs.append(('loop', f'{N}_f2', I(body)))
    E = Asm()
    for t in range(10, 16):
        for x in f2_step(t % 2, None, max(0, (15 - (t + 1)) * 4), last=(t == 15)): E(x)
    E(f's_lshl_b32 s{S_T}, s{S_FS}, 21')
    E(f's_lshl_b32 s{S_T2}, s{S_RB}, 16')
    E(f's_add_u32 s{S_T}, s{S_T}, s{S_T2}')
    E(f's_lshl_b32 s{S_T2}, s{S_WV}, 14')
    E(f's_add_u32 s{S_T}, s{S_T}, s{S_T2}')
    k = 0
    for mb in range(4):
        for nb in range(2):
            d = ACC + 16 * (2 * mb + nb)
            for a2 in range(2):
                o = VB1 + 4 * (k % 8); k += 1
                for r in range(4):
                    E(f'v_cvt_pk_bf16_f32 v{o+r}, v{d+8*a2+2*r}, v{d+8*a2+2*r+1}')
                E(f'buffer_store_dwordx4 v[{o}:{o+3}], v{VO}, s[32:35], s{S_T} offen offset:{a2*2048+nb*1024}')
        E(f's_add_u32 s{S_T}, s{S_T}, 4096')
    E.label(f'{N}_end')
    E('s_endpgm')
    segs.append(('lin', E.items))
    body = finish_loops(segs, verbose=verbose)
    return dict(name='k4_kernel', grid=256, block=256, lds=163840, body=body, vgpr=256, sgpr=56, accum=192)

if __name__ == '__main__':
    from k0 import build_k0
    from k3 import build_k3, build_k5
    open('../probe/k0345.s', 'w').write(make_file([build_k0(), build_k3(), build_k4(True), build_k5()]))
```

```python
import sys
from k0 import build_k0
from k2 import build_k2
from k3 import build_k3, build_k5
from k4 import build_k4
from asmlib import make_file
HDR = open('adaLN_cond__sliding_block_cached__dense_activation_squared_relu__prompt.s.ref').read().split('; Override launch')[0]
def build(path):
    txt = make_file([build_k0(), build_k2(), build_k3(), build_k4(), build_k5()], header=HDR)
    open(path, 'w').write(txt)
if __name__ == '__main__':
    build(sys.argv[1] if len(sys.argv) > 1 else 'adaLN_cond__sliding_block_cached__dense_activation_squared_relu__prompt.s')
```
